```python
import torch

def _softmax(x, axis=-1):
    return torch.softmax(x, dim=axis)
def _gelu(x):
    return torch.nn.functional.gelu(x, approximate="tanh")
def _silu(x):
    return torch.nn.functional.silu(x)
def _sigmoid(x):
    return torch.sigmoid(x)
def _layernorm(x, axis=-1, eps=1e-5):
    m = x.mean(dim=axis, keepdim=True)
    v = x.var(dim=axis, keepdim=True, unbiased=False)
    return (x - m) / torch.sqrt(v + eps)
def _scatter_add(tgt, idx, src, axis=0):
    return tgt.clone().index_add_(axis, idx, src)
def _segment_sum(src, seg, n):
    out = torch.zeros((n,) + src.shape[1:], dtype=src.dtype)
    return out.index_add_(0, seg, src)
def _pad(x, pw):
    flat = tuple(v for pair in reversed(pw) for v in pair)
    return torch.nn.functional.pad(x, flat)

kernel_name = 'parallel_sum__sliding_block__moe_arch_mod__prompt'

def setup_inputs():

    _w = (lambda a: (lambda t: t.to(torch.bfloat16) if t.is_floating_point() else t)(torch.as_tensor(a)))
    def _A_setup():
        B, S, D = 1, 2048, 640
        return {
            "x": _w((lambda *s: torch.randn(*s, dtype=torch.bfloat16) * 0.05)(B, S, D)),
            "wqkv": _w((lambda *s: torch.randn(*s, dtype=torch.bfloat16) * 0.05)(D, 3 * D)),
            "wo": _w((lambda *s: torch.randn(*s, dtype=torch.bfloat16) * 0.05)(D, D)),
        }
    _A_in = _A_setup()

    def _B_setup():
        B, S, D, F, C = 1, 2048, 640, 1536, 2
        return {
            "x": _w((lambda *s: torch.randn(*s, dtype=torch.bfloat16) * 0.05)(B, S, D)),
            "w_r": _w((lambda *s: torch.randn(*s, dtype=torch.bfloat16) * 0.05)(D)),
            "w_gate": _w((lambda *s: torch.randn(*s, dtype=torch.bfloat16) * 0.05)(D, F)),
            "w_up": _w((lambda *s: torch.randn(*s, dtype=torch.bfloat16) * 0.05)(D, F)),
            "w_down": _w((lambda *s: torch.randn(*s, dtype=torch.bfloat16) * 0.05)(F, D)),
        }
    _B_in = _B_setup()

    return {
        "A_x": _A_in["x"],
        "A_wqkv": _A_in["wqkv"],
        "A_wo": _A_in["wo"],
        "B_x": _B_in["x"],
        "B_w_r": _B_in["w_r"],
        "B_w_gate": _B_in["w_gate"],
        "B_w_up": _B_in["w_up"],
        "B_w_down": _B_in["w_down"],
    }

def reference(A_x, A_wqkv, A_wo, B_x, B_w_r, B_w_gate, B_w_up, B_w_down):
    def _A_ref(x, wqkv, wo):
        B, S, D = x.shape
        H = 32; Dh = D // H; W = 256
        qkv = (lambda x, *d: x.permute(*d))((x @ wqkv).reshape(B, S, 3, H, Dh), 2, 0, 3, 1, 4)
        q, k, v = qkv[0], qkv[1], qkv[2]
        scores = torch.einsum("bhqd,bhkd->bhqk", q, k) * (Dh ** -0.5)
        idx = torch.arange(S)
        mask = (idx[:, None] - idx[None, :] >= 0) & (idx[:, None] - idx[None, :] < W)
        scores = torch.where(mask[None, None], scores, -1e9)
        p = _softmax(scores, axis=-1)
        o = torch.einsum("bhqk,bhkd->bhqd", p, v)
        return (lambda x, *d: x.permute(*d))(o, 0, 2, 1, 3).reshape(B, S, D) @ wo

    def _B_ref(x, w_r, w_gate, w_up, w_down):
        B, S, D = x.shape
        C = 2
        r = x @ w_r
        idx = torch.argsort(-r, axis=-1)[:, :C]
        idx_e = (lambda x, n, axis: torch.repeat_interleave(x, n, dim=axis))(idx.reshape(B, C, 1), D, axis=2)
        x_sel = (lambda x, i, axis: torch.take_along_dim(x, i, dim=axis))(x, idx_e, axis=1)
        g = _silu(x_sel @ w_gate)
        u = x_sel @ w_up
        y = (g * u) @ w_down
        r_sel = _sigmoid((lambda x, i, axis: torch.take_along_dim(x, i, dim=axis))(r, idx, axis=1))
        y = y * r_sel.reshape(B, C, 1)
        b_off = (torch.arange(B) * S).reshape(B, 1)
        flat_idx = (idx + b_off).reshape(B * C)
        zero = (x * 0.0).reshape(B * S, D)
        upd = _scatter_add(zero, flat_idx, y.reshape(B * C, D), axis=0)
        return x + upd.reshape(B, S, D)

    x = A_x
    xn = _layernorm(x, axis=-1)
    return x + _A_ref(xn, A_wqkv, A_wo) + _B_ref(xn, B_w_r, B_w_gate, B_w_up, B_w_down)
```

```python
class Asm:
    def __init__(self):
        self.lines = []
    def __call__(self, s):
        for l in s.split("\n"):
            self.lines.append(l)
    def text(self):
        return "\n".join(self.lines) + "\n"

HEADER_COMMENT = """; Kernarg layout: 0 A_x, 8 A_wqkv, 16 A_wo, 24 B_x, 32 B_w_r, 40 B_w_gate, 48 B_w_up, 56 B_w_down, 64 d_out, 72 d_debug, 80 d_ws
"""

def kernel_begin(a, name):
    a(f".globl {name}\n.p2align 8\n.type {name},@function\n{name}:")

def kernel_desc(a, name, vgpr, sgpr=102, accum=None):
    if accum is None:
        accum = (vgpr + 3) // 4 * 4
    a(f""".amdhsa_kernel {name}
  .amdhsa_next_free_vgpr {vgpr}
  .amdhsa_next_free_sgpr {sgpr}
  .amdhsa_accum_offset {accum}
  .amdhsa_group_segment_fixed_size 0
  .amdhsa_kernarg_size 88
  .amdhsa_user_sgpr_count 2
  .amdhsa_user_sgpr_kernarg_segment_ptr 1
  .amdhsa_system_sgpr_workgroup_id_x 1
.end_amdhsa_kernel""")
```

```python
import sys, math, os
EXP = os.environ.get('EXP', '').split(',')
from asmgen import Asm, kernel_begin, kernel_desc

NAME = "parallel_sum__sliding_block__moe_arch_mod__prompt"
S = 2048; D = 640
WS_QKV = 0
SLOT = S * 40
WS_O = 0x800000
WS_STATS = 0xB00000
WS_R = 0xB10000
WS_YP = 0xB20000
WS_TOP = 0xB40000
WS_END = 0xC00000
QSCALE = (20 ** -0.5) * math.log2(math.e)

def f32bits(x):
    import struct
    return struct.unpack("<I", struct.pack("<f", x))[0]

def hexf(x):
    return "0x%08x" % f32bits(x)

STAMP = os.environ.get('STAMP', '') == '1'
WS_DBG = 0xB80000
def stamp(k, i):
    if STAMP:
        k(f"s_memtime s[{70+2*i}:{71+2*i}]")
def stamp_flush(k, n, lbl):
    if not STAMP: return
    k("s_waitcnt vmcnt(0) lgkmcnt(0)")
    stamp(k, n)
    k("s_waitcnt lgkmcnt(0)")
    for i in range(1, n + 1):
        k(f"s_sub_u32 s{70+2*i}, s{70+2*i}, s70")
        k(f"v_mov_b32 v{i}, s{70+2*i}")
    k(f"""v_mov_b32 v0, s70
s_lshl_b32 s3, s2, 6
s_add_u32 s3, s3, {WS_DBG}
s_cmp_lg_u32 s30, 0
s_cbranch_scc1 @skip_{lbl}
v_mov_b32 v20, 0
s_mov_b64 exec, 1
buffer_store_dwordx4 v[0:3], v20, s[20:23], s3 offen
buffer_store_dwordx4 v[4:7], v20, s[20:23], s3 offen offset:16
@skip_{lbl}:""")

class K:
    def __init__(self, a, pfx):
        self.a = a; self.pfx = pfx
    def __call__(self, s):
        self.a(s.replace("@", self.pfx + "_"))

def srd(k, base, ptr, nbytes):
    k(f"s_mov_b32 s{base}, s{ptr}\ns_mov_b32 s{base+1}, s{ptr+1}\ns_mov_b32 s{base+2}, {nbytes}\ns_mov_b32 s{base+3}, 0x20000")

def stats_math(k, vsum, vsq, vm, vrs, t0, t1):
    k(f"""
v_mul_f32 {t0}, {hexf(1.0/640)}, {vsum}          ; mean
v_mul_f32 {t1}, {hexf(1.0/640)}, {vsq}           ; E[x^2]
v_fma_f32 {t1}, -{t0}, {t0}, {t1}                ; var
v_max_f32 {t1}, 0, {t1}
v_cvt_pk_bf16_f32 {vm}, {t0}, {t1}
v_and_b32 {t1}, 0xffff0000, {vm}                 ; var_b
v_lshlrev_b32 {vm}, 16, {vm}                     ; mean_b
v_add_f32 {t1}, {hexf(1e-5)}, {t1}
v_cvt_pk_bf16_f32 {t1}, {t1}, {t1}
v_lshlrev_b32 {t1}, 16, {t1}                     ; bf16(var+eps)
v_sqrt_f32 {t1}, {t1}
s_nop 0
v_cvt_pk_bf16_f32 {t1}, {t1}, {t1}
v_lshlrev_b32 {t1}, 16, {t1}                     ; s_b
v_rcp_f32 {vrs}, {t1}
s_nop 0
""")
```

```python
from gen_common import *
def gen_k1(a, name):
    k = K(a, "k1")
    kernel_begin(a, name)
    k(f"""
s_cmp_ge_u32 s2, 256
s_cbranch_scc1 @end
{'s_memtime s[70:71]' if STAMP else ''}
s_load_dwordx4 s[4:7], s[0:1], 0          ; x, wqkv
s_load_dwordx2 s[16:17], s[0:1], 80       ; ws
s_load_dwordx2 s[18:19], s[0:1], 32       ; w_r
v_lshrrev_b32 v1, 6, v0
v_and_b32 v2, 63, v0                      ; lane
v_readfirstlane_b32 s30, v1
s_cmp_ge_u32 s2, 240
s_cbranch_scc1 @aux
s_and_b32 s33, s2, 7                      ; xcd
s_lshr_b32 s34, s2, 3                     ; t = 0..29
s_cmp_ge_u32 s34, 15
s_cselect_b32 s35, 1, 0
s_lshl_b32 s31, s33, 1
s_add_u32 s31, s31, s35                   ; i = 2*xcd + (t>=15)
s_mul_i32 s35, s35, 15
s_sub_u32 s32, s34, s35                   ; j = t%15
s_waitcnt lgkmcnt(0)
""")
    srd(k, 8, 4, S * 1280)
    srd(k, 12, 6, 640 * 3840)
    srd(k, 20, 16, WS_END)
    k("""
s_cmp_ge_u32 s30, 4
s_cbranch_scc0 @compute
s_sub_u32 s34, s30, 4                     ; lw
v_lshrrev_b32 v3, 3, v2                   ; lane>>3
s_lshl_b32 s35, s31, 7
s_lshl_b32 s36, s34, 5
s_add_u32 s35, s35, s36                   ; i*128 + lw*32
v_add_u32 v3, s35, v3
s_movk_i32 s38, 1280
v_mul_lo_u32 v6, v3, s38                  ; token*1280
v_lshrrev_b32 v4, 4, v2                   ; lane>>4  (0..3)
v_and_b32 v5, 7, v2
v_xor_b32 v7, v4, v5
v_lshlrev_b32 v7, 4, v7
v_add_u32 v10, v6, v7
v_xor_b32 v7, 64, v7
v_add_u32 v11, v6, v7
v_add_u32 v11, 10240, v11
v_lshlrev_b32 v7, 2, v4
v_and_b32 v5, 15, v2
v_xor_b32 v7, v7, v5
v_lshlrev_b32 v7, 4, v7
s_lshl_b32 s36, s34, 4
v_add_u32 v3, s36, v4
s_movk_i32 s38, 3840
v_mul_lo_u32 v3, v3, s38
v_add_u32 v12, v3, v7
s_lshl_b32 s39, s32, 8
v_add_u32 v12, s39, v12                   ; W voffset
s_lshl_b32 s44, s34, 12
s_mov_b32 s46, 0
s_mov_b32 s47, 0
s_mov_b32 s48, s44
""")
    def issue():
        for p in range(4):
            k(f"s_add_u32 m0, s48, {p*1024}")
            k(f"s_add_u32 s45, s46, {(p >> 1) * 20480}")
            k(f"buffer_load_dwordx4 v{10 + (p & 1)}, s[8:11], s45 offen lds")
        for p in range(4):
            k(f"s_add_u32 m0, s48, {16384 + p*1024}")
            k(f"s_add_u32 s45, s47, {p * 4 * 3840}")
            k(f"buffer_load_dwordx4 v12, s[12:15], s45 offen lds")
        k(f"""s_add_u32 s46, s46, 128
s_add_u32 s47, s47, {64*3840}
s_add_u32 s48, s48, 32768
s_and_b32 s48, s48, 0x1ffff""")
    k("""
v_and_b32 v3, 31, v2
v_lshrrev_b32 v4, 5, v2                   ; h
v_lshrrev_b32 v5, 1, v2
v_and_b32 v5, 7, v5                       ; key
v_lshlrev_b32 v6, 2, v4
v_xor_b32 v5, v5, v6                      ; (4h) ^ key
v_lshlrev_b32 v5, 4, v5
v_lshlrev_b32 v6, 7, v3
v_add_u32 v5, v5, v6
v_add_u32 v5, s44, v5                     ; + lw*4096
v_xor_b32 v17, 16, v5
v_xor_b32 v18, 32, v5
v_xor_b32 v19, 48, v5
v_mov_b32 v16, v5
v_lshrrev_b32 v5, 4, v2                   ; g
v_bfe_u32 v6, v2, 2, 2                    ; r
v_and_b32 v7, 3, v2                       ; c
v_lshrrev_b32 v8, 1, v5
v_lshlrev_b32 v8, 3, v8
v_add_u32 v8, v8, v6
v_lshlrev_b32 v8, 8, v8
v_and_b32 v9, 1, v5
v_lshlrev_b32 v9, 5, v9
v_add_u32 v8, v8, v9
v_lshlrev_b32 v7, 3, v7
v_add_u32 v8, v8, v7
v_add_u32 v8, 16384, v8
v_xor_b32 v9, s34, v6
v_lshlrev_b32 v9, 6, v9
v_add_u32 v20, v8, v9
s_mov_b32 s43, 0x3f803f80
v_mov_b32 v26, 0
v_mov_b32 v27, 0
v_mov_b32 v28, 0
s_mov_b32 s50, 0
""")
    def st_reads():
        if 'nostat' in EXP: return
        for i in range(4):
            k(f"v_add_u32 v{21+i}, s50, v{16+i}")
        k("v_add_u32 v25, s50, v20")
        for i in range(4):
            k(f"ds_read_b128 v[{32+4*i}:{35+4*i}], v{21+i}")
        for s_ in range(4):
            for q in range(2):
                k(f"ds_read_b64_tr_b16 v[{48+4*s_+2*q}:{49+4*s_+2*q}], v25 offset:{s_*4096 + q*1024}")
        k("s_add_u32 s50, s50, 32768\ns_and_b32 s50, s50, 0x1ffff")
    def st_dots():
        if 'nostat' in EXP: return
        k("s_waitcnt lgkmcnt(0)")
        for i in range(16):
            k(f"v_dot2c_f32_bf16 v26, s43, v{32+i}")
            k(f"v_dot2c_f32_bf16 v27, v{32+i}, v{32+i}")
            k(f"v_dot2c_f32_bf16 v28, s43, v{48+i}")
    def issue_dots():
        dots = []
        if 'nostat' not in EXP:
            for i in range(16):
                dots += [f"v_dot2c_f32_bf16 v26, s43, v{32+i}", f"v_dot2c_f32_bf16 v27, v{32+i}, v{32+i}", f"v_dot2c_f32_bf16 v28, s43, v{48+i}"]
        di = 0
        for p in range(8):
            if p < 4:
                k(f"s_add_u32 m0, s48, {p*1024}")
                k(f"s_add_u32 s45, s46, {(p >> 1) * 20480}")
                k(f"buffer_load_dwordx4 v{10 + (p & 1)}, s[8:11], s45 offen lds")
            else:
                k(f"s_add_u32 m0, s48, {16384 + (p-4)*1024}")
                k(f"s_add_u32 s45, s47, {(p-4) * 4 * 3840}")
                k(f"buffer_load_dwordx4 v12, s[12:15], s45 offen lds")
            if p == 1 and dots:
                k("s_waitcnt lgkmcnt(0)")
            if p >= 1:
                n = 7 if p < 7 else len(dots) - di
                for d in dots[di:di+n]:
                    k(d)
                di += n
        k(f"""s_add_u32 s46, s46, 128
s_add_u32 s47, s47, {64*3840}
s_add_u32 s48, s48, 32768
s_and_b32 s48, s48, 0x1ffff""")
    issue()
    issue()
    k("s_waitcnt vmcnt(8)\ns_barrier")
    st_reads(); issue_dots()
    k("s_waitcnt vmcnt(8)\ns_barrier")
    st_reads(); issue()
    k("s_mov_b32 s49, 6\n@ld_loop:")
    issue_dots()
    k("""s_waitcnt vmcnt(16)
s_barrier""")
    st_reads()
    k("""s_sub_u32 s49, s49, 1
s_cmp_lg_u32 s49, 0
s_cbranch_scc1 @ld_loop""")
    st_dots()
    k("s_waitcnt vmcnt(8)\ns_barrier")
    st_reads(); st_dots()
    k("s_waitcnt vmcnt(0)\ns_barrier")
    st_reads(); st_dots()
    k("""
s_nop 3
v_mov_b32 v29, v26
v_mov_b32 v30, v27
v_mov_b32 v31, v28
s_nop 1
v_permlane32_swap_b32 v26, v29
v_permlane32_swap_b32 v27, v30
v_permlane32_swap_b32 v28, v31
s_nop 1
v_add_f32 v26, v26, v29
v_add_f32 v27, v27, v30
v_add_f32 v28, v28, v31
""")
    stats_math(k, "v26", "v27", "v32", "v33", "v34", "v35")
    k(f"""
s_lshl_b32 s39, s34, 8
s_add_u32 s39, s39, 131072
v_lshlrev_b32 v34, 3, v3
v_add_u32 v34, s39, v34
ds_write_b64 v34, v[32:33]
s_lshl_b32 s39, s34, 7
s_add_u32 s39, s39, {131072+1024}
v_lshlrev_b32 v35, 2, v3
v_add_u32 v35, s39, v35
ds_write_b32 v35, v28
s_waitcnt lgkmcnt(0)
s_barrier
s_endpgm
""")
    k("""
@compute:
s_and_b32 s34, s30, 1                     ; a (n half)
s_lshr_b32 s35, s30, 1
v_and_b32 v3, 31, v2                      ; l&31
v_lshrrev_b32 v4, 5, v2                   ; h
v_lshrrev_b32 v5, 1, v2
v_and_b32 v5, 7, v5                       ; key
v_xor_b32 v5, v5, v4
v_lshlrev_b32 v5, 4, v5
v_lshlrev_b32 v6, 7, v3
v_add_u32 v5, v5, v6                      ; (l&31)*128 + ((h^key)<<4)
s_lshl_b32 s36, s35, 1
s_add_u32 s37, s36, s34                   ; block t=0: 2b + a
s_xor_b32 s38, s37, 1                     ; block t=1
s_lshl_b32 s39, s37, 12
s_lshl_b32 s40, s38, 12
""")
    for s in range(4):
        k(f"v_xor_b32 v6, {s << 5}, v5")
        k(f"v_add_u32 v{16+s}, s39, v6")
        k(f"v_add_u32 v{20+s}, s40, v6")
    k("""
; A addresses
v_lshrrev_b32 v5, 4, v2                   ; g
v_bfe_u32 v6, v2, 2, 2                    ; r
v_and_b32 v7, 3, v2                       ; c
v_lshrrev_b32 v8, 1, v5                   ; g>>1
v_lshlrev_b32 v8, 3, v8
v_add_u32 v8, v8, v6                      ; 8*(g>>1)+r
v_lshlrev_b32 v8, 8, v8                   ; *256
v_and_b32 v9, 1, v5
v_lshlrev_b32 v9, 5, v9
v_add_u32 v8, v8, v9
v_lshlrev_b32 v7, 3, v7
v_add_u32 v8, v8, v7
v_add_u32 v8, 16384, v8
s_lshl_b32 s36, s34, 1
s_add_u32 s41, s36, s35                   ; nblk u=0: 2a + b
s_xor_b32 s42, s41, 1                     ; nblk u=1
v_xor_b32 v9, s41, v6
v_lshlrev_b32 v9, 6, v9
v_add_u32 v24, v8, v9
v_xor_b32 v9, s42, v6
v_lshlrev_b32 v9, 6, v9
v_add_u32 v25, v8, v9
s_mov_b32 s43, 0x3f803f80
v_mov_b32 v26, 0
v_mov_b32 v27, 0
v_mov_b32 v28, 0
""")
    for r in range(64, 128):
        k(f"v_mov_b32 v{r}, 0")
    X = 32; Y = 48
    def reads(st, s, base):
        for u in range(2):
            for q in range(2):
                if 'notr' in EXP: continue
                k(f"ds_read_b64_tr_b16 v[{st+4*u+2*q}:{st+4*u+2*q+1}], v{24+u} offset:{base + s*4096 + q*1024}")
        for t in range(2):
            if 'nob128' in EXP: continue
            k(f"ds_read_b128 v[{st+8+4*t}:{st+11+4*t}], v{16+4*t+s} offset:{base}")
    def mfmas(st):
        i = 0
        for u in range(2):
            for t in range(2):
                acc = 64 + (u*2 + t) * 16
                k(f"v_mfma_f32_32x32x16_bf16 v[{acc}:{acc+15}], v[{st+4*u}:{st+4*u+3}], v[{st+8+4*t}:{st+11+4*t}], v[{acc}:{acc+15}]")
                i += 1
    def toggle():
        for r in list(range(16, 26)):
            k(f"v_xor_b32 v{r}, 0x10000, v{r}")
    stamp(k, 1)
    k("s_barrier")
    stamp(k, 2)
    reads(X, 0, 0)
    k("s_mov_b32 s49, 5\n@c_loop:")
    for half in range(2):
        base = half * 32768
        reads(Y, 1, base); k("s_waitcnt lgkmcnt(6)"); mfmas(X)
        reads(X, 2, base); k("s_waitcnt lgkmcnt(6)"); mfmas(Y)
        reads(Y, 3, base); k("s_waitcnt lgkmcnt(6)"); mfmas(X)
        k("s_waitcnt lgkmcnt(0)")
        if half == 0:
            k("s_barrier")
            reads(X, 0, 32768)
            mfmas(Y)
        else:
            k("""s_sub_u32 s49, s49, 1
s_cmp_eq_u32 s49, 0
s_cbranch_scc1 @c_tail
s_barrier""")
            toggle()
            reads(X, 0, 0)
            mfmas(Y)
            k("s_branch @c_loop")
    k("@c_tail:")
    mfmas(Y)
    stamp(k, 3)
    k(f"""
s_barrier
s_lshl_b32 s39, s37, 8
s_add_u32 s39, s39, 131072
v_lshlrev_b32 v34, 3, v3
v_add_u32 v34, s39, v34
s_lshl_b32 s39, s41, 7                    ; nblk u0 * 32 * 4B
s_add_u32 s39, s39, {131072+1024}
v_xor_b32 v35, 256, v34                   ; t1 (block^1)
ds_read_b64 v[16:17], v34
ds_read_b64 v[18:19], v35
v_lshlrev_b32 v8, 4, v4                   ; h*16
v_add_u32 v8, s39, v8
v_xor_b32 v9, 128, v8
""")
    for u in range(2):
        for g in range(4):
            k(f"ds_read_b128 v[{32+u*16+g*4}:{35+u*16+g*4}], v{8+u} offset:{g*32}")
    stamp(k, 4)
    k(f"""
s_lshl_b32 s39, s31, 7                    ; i*128
s_lshl_b32 s40, s37, 5
s_add_u32 s40, s40, s39
v_add_u32 v22, s40, v3
v_lshlrev_b32 v22, 3, v22
v_lshlrev_b32 v20, 14, v4
v_add_u32 v22, v22, v20                   ; t0
s_lshl_b32 s40, s38, 5
s_add_u32 s40, s40, s39
v_add_u32 v23, s40, v3
v_lshlrev_b32 v23, 3, v23
v_add_u32 v23, v23, v20                   ; t1
s_mov_b32 s44, 1.0
s_mov_b32 s45, {hexf(QSCALE)}
s_cmp_lt_u32 s32, 5
s_cselect_b32 s44, s45, s44
s_lshl_b32 s50, s32, 5
s_lshl_b32 s51, s41, 3
s_add_u32 s51, s51, s50
s_lshl_b32 s51, s51, 14                   ; (32j + 8 nblk(u0)) * 16384
s_lshl_b32 s52, s42, 3
s_add_u32 s52, s52, s50
s_lshl_b32 s52, s52, 14                   ; u1
s_waitcnt lgkmcnt(0)
v_mul_f32 v17, s44, v17                   ; rs' t0
v_mul_f32 v19, s44, v19                   ; rs' t1
v_mul_f32 v16, v16, v17                   ; m*rs' t0
v_mul_f32 v18, v18, v19                   ; m*rs' t1
s_nop 7
""")
    for u in range(2):
        for g in range(4):
            k(f"s_add_u32 s55, s{51+u}, {2*g*16384}")
            for t in range(2):
                acc = 64 + (u*2 + t) * 16 + g * 4
                cs = 32 + u*16 + g*4
                m = 16 + 2*t; rs = 17 + 2*t
                tmp = 24 + 4*t if (g & 1) == 0 else 8 + 4*t
                for p in range(2):
                    k(f"v_pk_mul_f32 v[{tmp+2*p}:{tmp+2*p+1}], v[{acc+2*p}:{acc+2*p+1}], v[{rs-1}:{rs}] op_sel:[0,1] op_sel_hi:[1,1]")
                for p in range(2):
                    k(f"v_pk_fma_f32 v[{tmp+2*p}:{tmp+2*p+1}], v[{cs+2*p}:{cs+2*p+1}], v[{m}:{m+1}], v[{tmp+2*p}:{tmp+2*p+1}] op_sel:[0,0,0] op_sel_hi:[1,0,1] neg_lo:[0,1,0] neg_hi:[0,1,0]")
                k(f"v_cvt_pk_bf16_f32 v{tmp}, v{tmp}, v{tmp+1}")
                k(f"v_cvt_pk_bf16_f32 v{tmp+1}, v{tmp+2}, v{tmp+3}")
                k(f"buffer_store_dwordx2 v[{tmp}:{tmp+1}], v{22+t}, s[20:23], s55 offen")
    stamp(k, 5)
    stamp_flush(k, 6, "c")
    k("""
s_endpgm
@aux:
s_waitcnt lgkmcnt(0)
""")
    srd(k, 8, 4, S * 1280)
    srd(k, 12, 18, 1280)
    srd(k, 20, 16, WS_END)
    k(f"""
s_sub_u32 s31, s2, 240
s_lshl_b32 s31, s31, 7
s_lshl_b32 s32, s30, 4
s_add_u32 s31, s31, s32
v_lshrrev_b32 v3, 4, v2                   ; l>>4
v_and_b32 v4, 15, v2                      ; part
v_lshlrev_b32 v5, 4, v4                   ; part*16
v_add_u32 v6, s31, v3
s_movk_i32 s38, 1280
v_mul_lo_u32 v6, v6, s38
v_add_u32 v6, v6, v5
""")
    for i in range(5):
        k(f"buffer_load_dwordx4 v[{16+4*i}:{19+4*i}], v5, s[12:15], 0 offen offset:{256*i}")
    for p in range(4):
        k(f"s_mov_b32 s40, {p*4*1280}")
        for i in range(5):
            r = 40 + p*20 + 4*i
            k(f"buffer_load_dwordx4 v[{r}:{r+3}], v6, s[8:11], s40 offen offset:{256*i}")
    k("s_mov_b32 s43, 0x3f803f80\nv_mov_b32 v8, 0\nv_mov_b32 v9, 0\nv_mov_b32 v10, 0\nv_mov_b32 v11, 0")
    def red16(regs):
        for sh in (8, 4, 2, 1):
            k("s_nop 2")
            for r in regs:
                k(f"v_add_f32_dpp {r}, {r}, {r} row_ror:{sh} row_mask:0xf bank_mask:0xf")
    k("s_waitcnt vmcnt(20)")
    for i in range(20):
        k(f"v_dot2c_f32_bf16 v11, s43, v{16+i}")
    red16(["v11"])
    for p in range(4):
        k(f"s_waitcnt vmcnt({15 - 5*p})")
        k("v_mov_b32 v12, 0\nv_mov_b32 v13, 0\nv_mov_b32 v14, 0")
        for i in range(20):
            r = 40 + p*20 + i
            k(f"v_dot2c_f32_bf16 v12, s43, v{r}")
            k(f"v_dot2c_f32_bf16 v13, v{r}, v{r}")
            k(f"v_dot2c_f32_bf16 v14, v{r}, v{16+i}")
        red16(["v12", "v13", "v14"])
        k(f"v_cmp_eq_u32 vcc, {p}, v4\ns_nop 1")
        k("v_cndmask_b32 v8, v8, v12, vcc\nv_cndmask_b32 v9, v9, v13, vcc\nv_cndmask_b32 v10, v10, v14, vcc")
    stats_math(k, "v8", "v9", "v12", "v13", "v14", "v15")
    k(f"""
v_fma_f32 v10, -v12, v11, v10
v_mul_f32 v10, v10, v13
v_cvt_pk_bf16_f32 v10, v10, v10
v_lshlrev_b32 v10, 16, v10
v_lshlrev_b32 v5, 2, v4
v_add_u32 v5, v5, v3
v_add_u32 v5, s31, v5
v_cmp_gt_u32 vcc, 4, v4
s_and_saveexec_b64 s[60:61], vcc
s_cbranch_execz @end
v_lshlrev_b32 v6, 3, v5
s_mov_b32 s40, {WS_STATS}
buffer_store_dwordx2 v[12:13], v6, s[20:23], s40 offen
v_lshlrev_b32 v6, 2, v5
s_mov_b32 s40, {WS_R}
buffer_store_dword v10, v6, s[20:23], s40 offen
@end:
s_endpgm
""")
```

```python
from gen_common import *

KBASE = 2048
GP = 4128
VBASE = KBASE + 5 * GP
CKB = VBASE + 5 * GP
CVB = CKB + 2304
while (CVB - VBASE) % 256 != 224: CVB += 8
ATT_LDS_END = CVB + 2304 + 256
NEG = -1.0e30
THRESH = 2.0 ** 40

QB1 = 32; QB2 = 36
KS = [40, 46]
VF = 52
SS = [64, 80]
PP = 96
OO = 104
CD = 120
CF = 136
VKA = 8; VK2 = 9; VV = 10; VQO = 11

def att_setup(k):
    k(f"""
s_cmp_ge_u32 s2, 224
s_cselect_b32 s31, 1, 0
s_cbranch_scc1 @att_pair
s_and_b32 s32, s2, 31                     ; head
s_lshr_b32 s33, s2, 5
s_add_u32 s33, s33, 1                     ; qr
s_and_b32 s34, s30, 3
s_lshl_b32 s35, s33, 8
s_sub_u32 s35, s35, 256
s_lshl_b32 s36, s34, 7
s_add_u32 s35, s35, s36                   ; token0
s_mov_b32 s36, s32
s_branch @att_dma
@att_pair:
s_sub_u32 s32, s2, 224
s_lshl_b32 s32, s32, 1                    ; head A
s_mov_b32 s33, 0
s_and_b32 s34, s30, 3
s_and_b32 s35, s34, 1
s_lshl_b32 s35, s35, 7                    ; token0
s_lshr_b32 s36, s34, 1
s_add_u32 s36, s36, s32
@att_dma:
s_lshr_b32 s37, s30, 2                    ; mat
s_lshl_b32 s38, s37, 5
s_add_u32 s38, s38, 32
s_add_u32 s38, s38, s36
s_mul_i32 s38, s38, {5*16384}
s_lshl_b32 s35, s35, 3
s_add_u32 s38, s38, s35
s_mul_i32 s39, s37, {5*GP}
s_lshl_b32 s40, s34, 10
s_add_u32 s39, s39, s40
s_add_u32 s39, s39, {KBASE}
v_lshlrev_b32 v3, 4, v2
""")
    for sub in range(5):
        k(f"s_add_u32 m0, s39, {sub*GP}")
        k(f"s_add_u32 s40, s38, {sub*16384}")
        k(f"buffer_load_dwordx4 v3, s[20:23], s40 offen lds")
    k(f"""
v_mov_b32 v4, 0x3f803f80
v_mov_b32 v5, 0x00003f80
v_mov_b32 v6, 0x00003f80
v_mov_b32 v7, 0
v_lshlrev_b32 v3, 3, v0                   ; tid*8  (0..4095)
v_mov_b32 v12, 2304
v_cmp_gt_u32 vcc, v12, v3
s_and_saveexec_b64 s[60:61], vcc
v_add_u32 v12, {CKB}, v3
v_add_u32 v13, {CVB}, v3
ds_write_b64 v12, v[4:5]
ds_write_b64 v13, v[6:7]
s_mov_b64 exec, s[60:61]
; ---- masks
v_and_b32 v3, 31, v2                      ; q local
v_lshrrev_b32 v4, 5, v2                   ; h
v_lshlrev_b32 v5, 3, v4                   ; 8h
v_sub_u32 v5, v3, v5                      ; q - 8h   (signed)
v_mov_b32 v6, {hexf(NEG)}
""")
    for r in range(16):
        kl = 16 * (r >> 3) + (r & 7)
        k(f"v_cmp_le_i32 vcc, {kl}, v5")
        k("s_nop 1")
        k(f"v_cndmask_b32_e64 v{CD+r}, v6, 0, vcc")
        k(f"v_cndmask_b32_e64 v{CF+r}, 0, v6, vcc")
    k(f"""
v_and_b32 v5, 19, v3                      ; bits 0,1,4
v_and_b32 v6, 4, v3
v_lshlrev_b32 v6, 1, v6
v_or_b32 v5, v5, v6
v_and_b32 v6, 8, v3
v_lshrrev_b32 v6, 1, v6
v_or_b32 v5, v5, v6                       ; pi(i)
v_lshlrev_b32 v5, 3, v5                   ; *8
v_mul_u32_u24 v6, {2*GP}, v4              ; group 2h
v_add_u32 v14, v5, v6
v_add_u32 v14, {KBASE}, v14
v_add_u32 v15, {KBASE + 4*GP}, v5
v_lshrrev_b32 v5, 4, v2
v_and_b32 v6, 1, v5                       ; dsel
v_bfe_u32 v7, v2, 2, 2                    ; r
v_and_b32 v12, 3, v2                      ; c
v_lshlrev_b32 v13, 3, v4
v_add_u32 v13, v13, v7
v_lshlrev_b32 v13, 3, v13                 ; (8hh+r)*8
v_lshlrev_b32 v16, 2, v6
v_add_u32 v16, v16, v12
v_mul_u32_u24 v17, {GP}, v16
v_add_u32 v17, v17, v13
v_add_u32 v17, {VBASE}, v17
v_cmp_lt_u32 s[62:63], 4, v16
v_cmp_eq_u32 s[64:65], 1, v4              ; h==1 lanes
""")

def att_task_addr(k):
    k(f"""
s_lshl_b32 s44, s41, 8                    ; bb*256
v_add_u32 v{VKA}, s44, v14
v_add_u32 v{VK2}, s44, v15
v_mov_b32 v18, {CKB}
v_cndmask_b32 v{VK2}, v{VK2}, v18, s[64:65]
v_add_u32 v{VV}, s44, v17
v_mov_b32 v18, {CVB}
v_cndmask_b32 v{VV}, v{VV}, v18, s[62:63]
v_add_u32 v18, s43, v3
v_lshlrev_b32 v18, 3, v18
v_lshlrev_b32 v19, 15, v4
v_add_u32 v19, v19, v18
s_mul_i32 s45, s42, {5*16384}
buffer_load_dwordx2 v[{QB1}:{QB1+1}], v19, s[20:23], s45 offen
s_add_u32 s46, s45, 16384
buffer_load_dwordx2 v[{QB1+2}:{QB1+3}], v19, s[20:23], s46 offen
s_add_u32 s46, s45, {4*16384}
buffer_load_dwordx2 v[{QB2}:{QB2+1}], v18, s[20:23], s46 offen
v_lshlrev_b32 v19, 14, v4
v_add_u32 v{VQO}, v19, v18
""")

def k_reads(k, blk_stage, st):
    base = KS[st]
    off = blk_stage * 256
    k(f"ds_read_b64 v[{base}:{base+1}], v{VKA} offset:{off}")
    k(f"ds_read_b64 v[{base+2}:{base+3}], v{VKA} offset:{off + GP}")
    k(f"ds_read_b64 v[{base+4}:{base+5}], v{VK2} offset:{off}")

def v_reads(k, stage):
    for a in range(2):
        for q in range(2):
            k(f"ds_read_b64_tr_b16 v[{VF+4*a+2*q}:{VF+4*a+2*q+1}], v{VV} offset:{stage*256 + a*128 + q*32}")

def qk(k, st, sreg, c):
    base = KS[st]
    cs = "0" if c is None else f"v[{c}:{c+15}]"
    k(f"v_mfma_f32_32x32x16_bf16 v[{sreg}:{sreg+15}], v[{base}:{base+3}], v[{QB1}:{QB1+3}], {cs}")
    k(f"v_mfma_f32_32x32x8_bf16 v[{sreg}:{sreg+15}], v[{base+4}:{base+5}], v[{QB2}:{QB2+1}], v[{sreg}:{sreg+15}]")

def exp_cvt(k, sreg):
    order = []
    for i in range(16):
        order.append(f"v_exp_f32 v{sreg+i}, v{sreg+i}")
        if i >= 3 and i % 2 == 1:
            j = (i - 3) // 2
            order.append(f"v_cvt_pk_bf16_f32 v{PP+j}, v{sreg+2*j}, v{sreg+2*j+1}")
    order.append("s_nop 0")
    order.append(f"v_cvt_pk_bf16_f32 v{PP+7}, v{sreg+14}, v{sreg+15}")
    for o in order: k(o)

def pv(k):
    for a in range(2):
        k(f"v_mfma_f32_32x32x16_bf16 v[{OO}:{OO+15}], v[{VF+4*a}:{VF+4*a+3}], v[{PP+4*a}:{PP+4*a+3}], v[{OO}:{OO+15}]")

def set_extras(k, vm):
    k(f"""
v_xor_b32 v18, 0x80000000, {vm}           ; -m
v_and_b32 v19, 0xffff0000, v18            ; hi
v_sub_f32 v20, v18, v19
v_and_b32 v21, 0xffff0000, v20            ; mid
v_sub_f32 v20, v20, v21                   ; rem2
s_mov_b32 s47, 0x07060302
v_perm_b32 v19, v21, v19, s47
v_lshrrev_b32 v20, 16, v20                ; lo
v_cndmask_b32 v{QB2}, v{QB2}, v19, s[64:65]
v_cndmask_b32 v{QB2+1}, v{QB2+1}, v20, s[64:65]
""")

def max16(k, sreg, dst, init=None):
    if init is None:
        k(f"v_max3_f32 {dst}, v{sreg}, v{sreg+1}, v{sreg+2}")
        rest = list(range(3, 16))
    else:
        rest = list(range(0, 16))
    while len(rest) >= 2:
        k(f"v_max3_f32 {dst}, {dst}, v{sreg+rest[0]}, v{sreg+rest[1]}"); rest = rest[2:]
    if rest:
        k(f"v_max_f32 {dst}, {dst}, v{sreg+rest[0]}")

def xhalf_max(k, v, t):
    k(f"""v_mov_b32 {t}, {v}
s_nop 1
v_permlane32_swap_b32 {v}, {t}
s_nop 1
v_max_f32 {v}, {v}, {t}""")

def att_body(k):
    k(f"""
s_waitcnt vmcnt(0) lgkmcnt(0)
s_barrier
s_mov_b32 s48, 0
@att_task:
s_cmp_eq_u32 s31, 0
s_cbranch_scc0 @att_p_params
s_mov_b32 s41, s30                        ; bb = w
s_mov_b32 s42, s32
s_lshl_b32 s43, s33, 8
s_lshl_b32 s44, s30, 5
s_add_u32 s43, s43, s44                   ; q0
s_mov_b32 s49, 0
s_branch @att_go
@att_p_params:
s_cmp_eq_u32 s48, 0
s_cbranch_scc0 @att_p2
s_sub_u32 s41, s30, 8                     ; bb = w-8
s_mov_b32 s42, s32
s_lshl_b32 s43, s30, 5
s_sub_u32 s49, 8, s30
s_branch @att_go
@att_p2:
s_sub_u32 s41, 7, s30                     ; bb = 7-w
s_add_u32 s42, s32, 1
s_lshl_b32 s43, s41, 5                    ; q0 = 32*(7-w)
s_add_u32 s49, s30, 1
@att_go:
""")
    att_task_addr(k)
    k(f"s_mov_b32 s50, 0")
    k_reads(k, 8, 0)
    k(f"""
s_waitcnt vmcnt(0)
v_cndmask_b32 v{QB2}, v{QB2}, 0, s[64:65]""".replace(f"v_cndmask_b32 v{QB2}, v{QB2}, 0, s[64:65]", f"v_cndmask_b32_e64 v{QB2}, v{QB2}, 0, s[64:65]\nv_cndmask_b32_e64 v{QB2+1}, v{QB2+1}, 0, s[64:65]"))
    k("s_waitcnt lgkmcnt(0)\ns_nop 1")
    qk(k, 0, SS[0], CD)
    k("s_nop 15")
    max16(k, SS[0], "v22")
    xhalf_max(k, "v22", "v23")
    k("@att_run:")
    set_extras(k, "v22")
    for r in range(16):
        k(f"v_mov_b32 v{OO+r}, 0")
    for e in range(1, 9):
        k(f"s_cmp_eq_u32 s49, {e}\ns_cbranch_scc1 @att_stub{e}")
    def stub(e):
        k(f"@att_stub{e}:")
        k_reads(k, e, e & 1)
        if e < 8:
            k_reads(k, e + 1, (e + 1) & 1)
            k("s_waitcnt lgkmcnt(3)")
        else:
            k("s_waitcnt lgkmcnt(0)")
        qk(k, e & 1, SS[e & 1], CF if e == 0 else (CD if e == 8 else None))
        k("s_nop 7")
        if e != 0:
            k(f"s_branch @att_stage{e}")
    for e in range(8, 0, -1):
        pass
    k("s_branch @att_stub0")
    for e in range(1, 9):
        stub(e)
    stub(0)
    for e in range(9):
        k(f"@att_stage{e}:")
        v_reads(k, e)
        if e + 2 <= 8:
            k_reads(k, e + 2, e & 1)
            k("s_waitcnt lgkmcnt(7)")
        elif e + 1 <= 8:
            k("s_waitcnt lgkmcnt(4)")
        if e < 8:
            qk(k, (e + 1) & 1, SS[(e + 1) & 1], CD if e + 1 == 8 else None)
        else:
            k("s_nop 4")
        exp_cvt(k, SS[e & 1])
        k("s_waitcnt lgkmcnt(0)\ns_nop 0")
        pv(k)
    k(f"""
s_nop 15
v_mov_b32 v18, {hexf(THRESH)}
v_cmp_nlt_f32 vcc, v{OO+12}, v18
s_cmp_lg_u32 s50, 0
s_cbranch_scc1 @att_fin
s_nop 4
s_cmp_eq_u64 vcc, 0
s_cbranch_scc1 @att_fin
s_mov_b32 s50, 1
v_cndmask_b32_e64 v{QB2}, v{QB2}, 0, s[64:65]
v_cndmask_b32_e64 v{QB2+1}, v{QB2+1}, 0, s[64:65]
v_mov_b32 v22, {hexf(NEG)}
s_mov_b32 s51, s49                        ; stage
v_mov_b32 v24, v{VKA}
v_mov_b32 v25, v{VK2}
@att_slow:
s_lshl_b32 s52, s51, 8
v_add_u32 v{VKA}, s52, v24
v_add_u32 v{VK2}, s52, v25
""")
    k_reads(k, 0, 0)
    k("s_waitcnt lgkmcnt(0)")
    k("s_cmp_eq_u32 s51, 0\ns_cbranch_scc1 @att_slow_far\ns_cmp_eq_u32 s51, 8\ns_cbranch_scc1 @att_slow_diag")
    qk(k, 0, SS[0], None)
    k("s_branch @att_slow_m\n@att_slow_far:")
    qk(k, 0, SS[0], CF)
    k("s_branch @att_slow_m\n@att_slow_diag:")
    qk(k, 0, SS[0], CD)
    k("@att_slow_m:\ns_nop 15")
    max16(k, SS[0], "v22", init=True)
    k(f"""s_add_u32 s51, s51, 1
s_cmp_le_u32 s51, 8
s_cbranch_scc1 @att_slow
v_mov_b32 v{VKA}, v24
v_mov_b32 v{VK2}, v25
""")
    xhalf_max(k, "v22", "v23")
    k(f"""s_branch @att_run
@att_fin:
v_rcp_f32 v18, v{OO+12}
s_nop 0
""")
    for r in range(0, 12, 2):
        k(f"v_pk_mul_f32 v[{OO+r}:{OO+r+1}], v[{OO+r}:{OO+r+1}], v[18:19] op_sel_hi:[1,0]")
    for g in range(3):
        k(f"v_cvt_pk_bf16_f32 v{PP+2*g}, v{OO+4*g}, v{OO+4*g+1}")
        k(f"v_cvt_pk_bf16_f32 v{PP+2*g+1}, v{OO+4*g+2}, v{OO+4*g+3}")
    k(f"""
s_mul_i32 s45, s42, {5*16384}
s_add_u32 s45, s45, {WS_O}
buffer_store_dwordx2 v[{PP}:{PP+1}], v{VQO}, s[20:23], s45 offen
s_add_u32 s46, s45, {2*16384}
buffer_store_dwordx2 v[{PP+2}:{PP+3}], v{VQO}, s[20:23], s46 offen
s_add_u32 s46, s45, {4*16384}
s_mov_b32 exec_hi, 0
buffer_store_dwordx2 v[{PP+4}:{PP+5}], v{VQO}, s[20:23], s46 offen
s_mov_b64 exec, -1
s_add_u32 s48, s48, 1
s_cmp_eq_u32 s31, 0
s_cbranch_scc1 @att_done
s_cmp_lt_u32 s48, 2
s_cbranch_scc1 @att_task
@att_done:
""")

def wave_max_u32(k, v):
    for ctl in ("row_shr:1", "row_shr:2", "row_shr:4", "row_shr:8"):
        k(f"s_nop 1\nv_max_u32_dpp {v}, {v}, {v} {ctl} row_mask:0xf bank_mask:0xf bound_ctrl:0")
    k(f"s_nop 1\nv_max_u32_dpp {v}, {v}, {v} row_bcast:15 row_mask:0xa bank_mask:0xf")
    k(f"s_nop 1\nv_max_u32_dpp {v}, {v}, {v} row_bcast:31 row_mask:0xc bank_mask:0xf")

MOE_GW = 64
MOE_DW = 184
def moe_load_weights(k):
    k(f"""
v_and_b32 v3, 15, v2                      ; g
v_lshrrev_b32 v4, 4, v2                   ; kq
v_mul_u32_u24 v5, {8*3072}, v4
v_mul_u32_u24 v6, 12, v3
v_add_u32 v5, v5, v6
s_mul_i32 s32, s31, 192
v_add_u32 v5, s32, v5
s_and_b32 s33, s30, 3
s_mul_i32 s34, s33, {5*32*3072}
""")
    for un in range(5):
        for i in range(8):
            r = MOE_GW + un*24 + i*3
            k(f"s_add_u32 s35, s34, {(un*32 + i)*3072}")
            if i % 2 == 0:
                k(f"buffer_load_dwordx3 v[{r}:{r+2}], v5, s[8:11], s35 offen")
            else:
                k(f"buffer_load_dword v{r}, v5, s[8:11], s35 offen")
                k(f"buffer_load_dwordx2 v[{r+1}:{r+2}], v5, s[8:11], s35 offen offset:4")
    k(f"""
; down: unit n = w, w+8 ; cb = n%5, s = n/5 ; rows f = 96u + 32 s + 8kq + i ; cols 128cb + 8g
v_mul_u32_u24 v6, {8*1280}, v4
v_lshlrev_b32 v7, 4, v3
v_add_u32 v6, v6, v7
s_mul_i32 s36, s31, {96*1280}
""")
    for un in range(2):
        k(f"""s_add_u32 s37, s30, {8*un}
s_mul_hi_u32 s38, s37, 858993460          ; s = n/5
s_mul_i32 s39, s38, 5
s_sub_u32 s39, s37, s39                   ; cb
s_mul_i32 s40, s38, {32*1280}
s_lshl_b32 s41, s39, 8
s_add_u32 s40, s40, s41
s_add_u32 s40, s40, s36
s_mov_b32 s{44+2*un}, s38
s_mov_b32 s{45+2*un}, s39""")
        for i in range(8):
            r = MOE_DW + un*32 + i*4
            k(f"s_add_u32 s42, s40, {i*1280}")
            k(f"buffer_load_dwordx4 v[{r}:{r+3}], v6, s[12:15], s42 offen")

M_RED = 0
M_P = 256
M_H = M_P + 6144
M_Y = M_H + 512
MOE_LDS_END = M_Y + 15360

def moe_top2(k):
    k(f"""
v_lshlrev_b32 v8, 4, v0
s_mov_b32 s50, {WS_R}
buffer_load_dwordx4 v[16:19], v8, s[20:23], s50 offen GLDFLAG
v_lshlrev_b32 v9, 2, v0                   ; idx base
s_movk_i32 s51, 2047
s_waitcnt vmcnt(0)
""".replace("GLDFLAG", ""))
    for i in range(4):
        k(f"""v_ashrrev_i32 v20, 31, v{16+i}
v_or_b32 v20, 0x80000000, v20
v_xor_b32 v{16+i}, v{16+i}, v20
v_and_b32 v{16+i}, 0xffff0000, v{16+i}
v_sub_u32 v20, s51, v9
v_subrev_u32 v20, {i}, v20                ; 2047 - idx
v_or_b32 v{16+i}, v{16+i}, v20""")
    def blockmax(tag, dst_s):
        k("v_max_u32 v21, v16, v17\nv_max_u32 v22, v18, v19\nv_max_u32 v21, v21, v22")
        wave_max_u32(k, "v21")
        k(f"""s_nop 1
v_readlane_b32 s56, v21, 63
s_lshl_b32 s57, s30, 2
s_add_u32 s57, s57, {M_RED + tag*32}
v_mov_b32 v22, s57
v_mov_b32 v23, s56
ds_write_b32 v22, v23
s_waitcnt lgkmcnt(0)
s_barrier
v_mov_b32 v22, {M_RED + tag*32}
ds_read_b128 v[24:27], v22
ds_read_b128 v[28:31], v22 offset:16
s_waitcnt lgkmcnt(0)
v_max_u32 v24, v24, v25
v_max_u32 v26, v26, v27
v_max_u32 v28, v28, v29
v_max_u32 v30, v30, v31
v_max_u32 v24, v24, v26
v_max_u32 v28, v28, v30
v_max_u32 v24, v24, v28
s_nop 0
v_readfirstlane_b32 {dst_s}, v24""")
    blockmax(0, "s58")
    k("s_nop 3")
    for i in range(4):
        k(f"v_cmp_ne_u32 vcc, s58, v{16+i}\ns_nop 1\nv_cndmask_b32 v{16+i}, 0, v{16+i}, vcc")
    blockmax(1, "s59")
    k("""s_nop 3
s_and_b32 s52, s58, 0x7ff
s_sub_u32 s52, 2047, s52                  ; idx1
s_and_b32 s53, s59, 0x7ff
s_sub_u32 s53, 2047, s53                  ; idx2
s_and_b32 s54, s58, 0xffff0000
s_and_b32 s55, s59, 0xffff0000
s_xor_b32 s56, s54, 0x80000000
s_not_b32 s57, s54
s_and_b32 s57, s57, 0xffff0000
s_bitcmp1_b32 s54, 31
s_cselect_b32 s54, s56, s57
s_xor_b32 s56, s55, 0x80000000
s_not_b32 s57, s55
s_and_b32 s57, s57, 0xffff0000
s_bitcmp1_b32 s55, 31
s_cselect_b32 s55, s56, s57
""")

def moe_compute(k):
    k(f"""
v_and_b32 v8, 1, v2
v_cmp_eq_u32 vcc, 1, v8
v_mov_b32 v9, s52
v_mov_b32 v10, s53
v_cndmask_b32 v9, v9, v10, vcc
v_lshlrev_b32 v10, 3, v9
s_mov_b32 s50, {WS_STATS}
buffer_load_dwordx2 v[12:13], v10, s[20:23], s50 offen
s_movk_i32 s50, 1280
v_mul_lo_u32 v9, v9, s50
v_lshlrev_b32 v10, 4, v4                  ; kq*16
v_add_u32 v9, v9, v10
s_and_b32 s33, s30, 3
s_mul_i32 s34, s33, {5*64}
""")
    for un in range(5):
        k(f"s_add_u32 s35, s34, {un*64}")
        k(f"buffer_load_dwordx4 v[{16+4*un}:{19+4*un}], v9, s[4:7], s35 offen")
    k("s_waitcnt vmcnt(0)")
    for i in range(20):
        r = 16 + i
        k(f"""v_lshlrev_b32 v40, 16, v{r}
v_and_b32 v41, 0xffff0000, v{r}
v_pk_add_f32 v[40:41], v[40:41], v[12:13] op_sel_hi:[1,0] neg_lo:[0,1] neg_hi:[0,1]
v_cvt_pk_bf16_f32 v40, v40, v41
v_and_b32 v41, 0xffff0000, v40
v_lshlrev_b32 v40, 16, v40
v_pk_mul_f32 v[40:41], v[40:41], v[12:13] op_sel:[0,1] op_sel_hi:[1,1]
v_cvt_pk_bf16_f32 v{r}, v40, v41""")
    k("s_mov_b32 s50, 0x05040100\ns_mov_b32 s51, 0x07060302")
    for r in range(40, 64):
        k(f"v_mov_b32 v{r}, 0")
    n = 0
    for un in range(5):
        for c in range(6):
            fr = 248 + 4 * (n & 1); n += 1
            for p in range(4):
                lo = MOE_GW + un*24 + (2*p)*3 + (c >> 1)
                hi = MOE_GW + un*24 + (2*p+1)*3 + (c >> 1)
                k(f"v_perm_b32 v{fr+p}, v{hi}, v{lo}, s{50 + (c & 1)}")
            k("s_nop 1")
            k(f"v_mfma_f32_16x16x32_bf16 v[{40+4*c}:{43+4*c}], v[{fr}:{fr+3}], v[{16+4*un}:{19+4*un}], v[{40+4*c}:{43+4*c}]")
    k(f"""
s_nop 7
v_and_b32 v8, 15, v2
v_mul_u32_u24 v9, {96*4}, v8
v_mul_u32_u24 v10, 96, v4
v_add_u32 v9, v9, v10
s_mul_i32 s34, s30, {2*96*4}
s_add_u32 s34, s34, {M_P}
v_add_u32 v9, s34, v9
v_cmp_gt_u32 vcc, 2, v8
s_and_saveexec_b64 s[60:61], vcc
""")
    for c in range(6):
        for r in range(4):
            k(f"ds_write_b32 v9, v{40+4*c+r} offset:{(6*r + c)*4}")
    k(f"""
s_mov_b64 exec, s[60:61]
s_waitcnt lgkmcnt(0)
s_barrier
; threads t<192: tok = t/96, f = t%96
v_cmp_gt_u32 vcc, 192, v0
s_and_saveexec_b64 s[60:61], vcc
s_cbranch_execz @moe_h_done
v_lshlrev_b32 v9, 2, v0                   ; (tok*96+f)*4
v_add_u32 v9, {M_P}, v9
""")
    for m in range(2):
        for wq in range(4):
            k(f"ds_read_b32 v{16+m*4+wq}, v9 offset:{(m*4+wq)*768}")
    k(f"""s_waitcnt lgkmcnt(0)
v_add_f32 v16, v16, v17
v_add_f32 v18, v18, v19
v_add_f32 v20, v20, v21
v_add_f32 v22, v22, v23
v_add_f32 v16, v16, v18
v_add_f32 v20, v20, v22
v_cvt_pk_bf16_f32 v16, v16, v20
v_and_b32 v20, 0xffff0000, v16            ; u
v_lshlrev_b32 v16, 16, v16                ; g
v_mul_f32 v17, {hexf(-math.log2(math.e))}, v16
v_exp_f32 v17, v17
s_nop 0
v_add_f32 v17, 1.0, v17
v_rcp_f32 v17, v17
s_nop 0
v_mul_f32 v16, v16, v17                   ; silu
v_cvt_pk_bf16_f32 v16, v16, v16
v_lshlrev_b32 v16, 16, v16
v_mul_f32 v16, v16, v20
v_cvt_pk_bf16_f32 v16, v16, v16           ; h
v_lshlrev_b32 v9, 1, v0
v_add_u32 v9, {M_H}, v9
ds_write_b16 v9, v16
@moe_h_done:
s_mov_b64 exec, s[60:61]
s_waitcnt lgkmcnt(0)
s_barrier
; ---- down
v_and_b32 v8, 1, v2
v_mul_u32_u24 v9, 192, v8
v_lshlrev_b32 v10, 4, v4
v_add_u32 v9, v9, v10
v_add_u32 v9, {M_H}, v9                   ; H[tok][8kq]
""")
    for un in range(2):
        if un == 1:
            k("s_cmp_eq_u32 s30, 7\ns_cbranch_scc1 @moe_dn_done")
        k(f"""s_lshl_b32 s34, s{44+2*un}, 6            ; s*32*2B
v_add_u32 v10, s34, v9
ds_read_b128 v[16:19], v10
s_waitcnt lgkmcnt(0)""")
        for c in range(8):
            fr = 248 + 4 * (c & 1)
            for p in range(4):
                lo = MOE_DW + un*32 + (2*p)*4 + (c >> 1)
                hi = MOE_DW + un*32 + (2*p+1)*4 + (c >> 1)
                k(f"v_perm_b32 v{fr+p}, v{hi}, v{lo}, s{50 + (c & 1)}")
            k("s_nop 1")
            k(f"v_mfma_f32_16x16x32_bf16 v[{24+4*c}:{27+4*c}], v[{fr}:{fr+3}], v[16:19], 0")
        k(f"""s_nop 7
v_and_b32 v8, 15, v2
v_mul_u32_u24 v10, {640*4}, v8
v_lshlrev_b32 v11, 7, v4                  ; 32kq*4
v_add_u32 v10, v10, v11
s_mul_i32 s34, s{44+2*un}, {2*640*4}
s_lshl_b32 s35, s{45+2*un}, 9
s_add_u32 s34, s34, s35
s_add_u32 s34, s34, {M_Y}
v_add_u32 v10, s34, v10
v_cmp_gt_u32 vcc, 2, v8
s_and_saveexec_b64 s[60:61], vcc""")
        for c in range(8):
            for r in range(4):
                k(f"ds_write_b32 v10, v{24+4*c+r} offset:{(8*r + c)*4}")
        k("s_mov_b64 exec, s[60:61]")
    k(f"""@moe_dn_done:
s_waitcnt lgkmcnt(0)
s_barrier
v_mov_b32 v8, 320
v_cmp_gt_u32 vcc, v8, v0
s_and_saveexec_b64 s[60:61], vcc
s_cbranch_execz @moe_y_done
v_lshlrev_b32 v9, 4, v0                   ; (tok*640+n)*4 with 4 per thread
v_add_u32 v10, {M_Y}, v9
ds_read_b128 v[16:19], v10
ds_read_b128 v[20:23], v10 offset:5120
ds_read_b128 v[24:27], v10 offset:10240
s_waitcnt lgkmcnt(0)
v_pk_add_f32 v[16:17], v[16:17], v[20:21]
v_pk_add_f32 v[18:19], v[18:19], v[22:23]
v_pk_add_f32 v[16:17], v[16:17], v[24:25]
v_pk_add_f32 v[18:19], v[18:19], v[26:27]
s_mul_i32 s34, s31, 5120
s_add_u32 s34, s34, {WS_YP}
buffer_store_dwordx4 v[16:19], v9, s[20:23], s34 offen STFLAG
@moe_y_done:
s_mov_b64 exec, s[60:61]
; ---- TOP record written by u==0, wave 0: idx1, idx2, sig1, sig2
s_cmp_lg_u32 s31, 0
s_cbranch_scc1 @moe_end
s_cmp_lg_u32 s30, 0
s_cbranch_scc1 @moe_end
v_mov_b32 v16, s54
v_mov_b32 v17, s55
v_mul_f32 v16, {hexf(-math.log2(math.e))}, v16
v_mul_f32 v17, {hexf(-math.log2(math.e))}, v17
v_exp_f32 v16, v16
v_exp_f32 v17, v17
s_nop 0
v_add_f32 v16, 1.0, v16
v_add_f32 v17, 1.0, v17
v_rcp_f32 v16, v16
v_rcp_f32 v17, v17
s_nop 0
v_cvt_pk_bf16_f32 v16, v16, v17
v_and_b32 v19, 0xffff0000, v16
v_lshlrev_b32 v18, 16, v16
v_mov_b32 v16, s52
v_mov_b32 v17, s53
v_mov_b32 v8, 0
s_mov_b32 s34, {WS_TOP}
s_mov_b64 exec, 1
buffer_store_dwordx4 v[16:19], v8, s[20:23], s34 offen STFLAG
s_mov_b64 exec, -1
@moe_end:
""".replace("STFLAG", ""))

def gen_k2(a, name):
    k = K(a, "k2")
    kernel_begin(a, name)
    k(f"""
s_cmp_ge_u32 s2, 256
s_cbranch_scc1 @end
{'s_memtime s[70:71]' if STAMP else ''}
s_load_dwordx2 s[16:17], s[0:1], 80       ; ws
s_load_dwordx2 s[18:19], s[0:1], 0        ; x
s_load_dwordx4 s[24:27], s[0:1], 40
s_load_dwordx2 s[28:29], s[0:1], 56       ; down
v_lshrrev_b32 v1, 6, v0
v_and_b32 v2, 63, v0
v_readfirstlane_b32 s30, v1
s_waitcnt lgkmcnt(0)
""")
    srd(k, 20, 16, WS_END)
    k("s_cmp_ge_u32 s2, 240\ns_cbranch_scc1 @moe")
    att_setup(k)
    stamp(k, 1)
    att_body(k)
    stamp(k, 2)
    stamp_flush(k, 3, "a")
    k("s_endpgm\n@moe:")
    k(f"""
s_sub_u32 s31, s2, 240
s_cmp_ge_u32 s30, 4
s_cselect_b32 s8, s26, s24
s_cselect_b32 s9, s27, s25
s_mov_b32 s10, {640*3072}
s_mov_b32 s11, 0x20000
""")
    srd(k, 12, 28, 1536*1280)
    srd(k, 4, 18, S*1280)
    moe_load_weights(k)
    moe_top2(k)
    moe_compute(k)
    k("@end:\ns_endpgm")
```

```python
from gen_common import *

WQ = 25600
WQP = WQ + 128
WO_LDS = 4 * WQP
T_BASE = WO_LDS
T_RS = 336
T_SZ = 64 * T_RS
LDS_BYTES = T_BASE + 2 * T_SZ

def g2_decode(k):
    k("""
s_and_b32 s33, s2, 7
s_lshl_b32 s33, s33, 2
s_bfe_u32 s34, s2, 0x20003                ; (id>>3)&3
s_add_u32 s31, s33, s34                   ; tbk
s_lshr_b32 s32, s2, 5                     ; cb
""")

def g2_load_wo(k):
    k(f"""
; per-lane offsets for 5 instr pattern: q' = m*64 + lane ; row = q'/10, cc = q'%10
s_mov_b32 s35, 429496730                  ; ceil(2^32/10)
""")
    for m in range(5):
        k(f"""v_add_u32 v3, {m*64}, v2
v_mul_hi_u32 v4, v3, s35                  ; row
v_mul_u32_u24 v5, 10, v4
v_sub_u32 v5, v3, v5                      ; cc
v_mul_u32_u24 v4, 1280, v4
v_lshlrev_b32 v5, 4, v5
v_add_u32 v{8+m}, v4, v5""")
    k(f"""
s_lshr_b32 s36, s30, 1                    ; kq
s_and_b32 s37, s30, 1
s_mul_i32 s38, s36, {160*1280}
s_mul_i32 s39, s32, 160
s_add_u32 s38, s38, s39
s_mul_i32 s39, s36, {WQP}
s_cmp_eq_u32 s37, 0
s_cbranch_scc0 @wo_odd
""")
    def ins(m):
        k(f"s_add_u32 m0, s39, {m*1024}")
        k(f"s_add_u32 s40, s38, {(m // 5) * 32 * 1280}")
        k(f"buffer_load_dwordx4 v{8 + m % 5}, s[8:11], s40 offen lds")
    for m in range(13): ins(m)
    k("s_branch @wo_done\n@wo_odd:")
    for m in range(13, 25): ins(m)
    k("@wo_done:")

def g2_prefetch_x(k):
    k("s_mov_b32 s35, 429496730")
    for ps in range(2):
        k(f"""v_add_u32 v3, {512*ps}, v0
v_mul_hi_u32 v4, v3, s35
v_mul_u32_u24 v5, 10, v4
v_sub_u32 v5, v3, v5                      ; part
v_mul_u32_u24 v6, {T_RS}, v4
v_lshlrev_b32 v7, 5, v5
v_add_u32 v{80+ps}, v6, v7
v_add_u32 v{80+ps}, {T_BASE}, v{80+ps}
s_lshl_b32 s36, s31, 6
v_add_u32 v{78+ps}, s36, v4               ; token
v_mul_u32_u24 v6, 1280, v{78+ps}
v_lshlrev_b32 v7, 4, v5
v_add_u32 v6, v6, v7
s_mul_i32 s36, s32, 160
v_add_u32 v{76+ps}, s36, v6
v_lshlrev_b32 v6, 3, v{78+ps}
s_mov_b32 s36, {WS_STATS}""")
        if ps == 1:
            k("s_cmp_ge_u32 s30, 2\ns_cbranch_scc1 @px_skip")
        k(f"buffer_load_dwordx4 v[{64+4*ps}:{67+4*ps}], v{76+ps}, s[4:7], 0 offen")
        k(f"buffer_load_dwordx2 v[{72+2*ps}:{73+2*ps}], v6, s[20:23], s36 offen")
    k("@px_skip:")

def g2_load_o(k):
    k(f"""
v_and_b32 v3, 15, v2
v_lshrrev_b32 v4, 4, v2                   ; kq
s_lshl_b32 s36, s31, 6
s_and_b32 s37, s30, 3
s_lshl_b32 s37, s37, 4
s_add_u32 s36, s36, s37
v_add_u32 v3, s36, v3
v_lshlrev_b32 v3, 3, v3                   ; token*8
s_mov_b32 s36, {40*16384}
v_mul_lo_u32 v5, v4, s36
v_add_u32 v82, v3, v5
s_lshr_b32 s37, s30, 2
s_mul_i32 s37, s37, {20*16384}
s_add_u32 s37, s37, {WS_O}
""")
    for s in range(10):
        for e in range(2):
            k(f"s_add_u32 s38, s37, {(2*s+e)*16384}")
            k(f"buffer_load_dwordx2 v[{84+4*s+2*e}:{85+4*s+2*e}], v82, s[20:23], s38 offen OLDFLAG".replace(" OLDFLAG", ""))

def g2_main(k):
    k(f"""
v_lshrrev_b32 v4, 4, v2                   ; kq
v_bfe_u32 v5, v2, 2, 2                    ; r
v_and_b32 v6, 3, v2                       ; c
v_mul_u32_u24 v7, {WQP}, v4
v_mul_u32_u24 v5, 160, v5
v_add_u32 v7, v7, v5
v_lshlrev_b32 v6, 3, v6
v_add_u32 v7, v7, v6
s_lshr_b32 s37, s30, 2
s_mul_i32 s37, s37, {10*8*160}
v_add_u32 v83, s37, v7                    ; vA
""")
    for r in range(44, 64):
        k(f"v_mov_b32 v{r}, 0")
    FS = [124, 144]
    def reads(s, st):
        for nb in range(5):
            for q in range(2):
                r = FS[st] + 4*nb + 2*q
                k(f"ds_read_b64_tr_b16 v[{r}:{r+1}], v83 offset:{(s*8 + 4*q)*160 + nb*32}")
    reads(0, 0)
    for s in range(10):
        if s + 1 < 10:
            reads(s + 1, (s + 1) & 1)
            k(f"s_waitcnt lgkmcnt(10) vmcnt({2*(9-s)})")
        else:
            k("s_waitcnt lgkmcnt(0) vmcnt(0)")
        for nb in range(5):
            r = FS[s & 1] + 4*nb
            k(f"v_mfma_f32_16x16x32_bf16 v[{44+4*nb}:{47+4*nb}], v[{r}:{r+3}], v[{84+4*s}:{87+4*s}], v[{44+4*nb}:{47+4*nb}]")
    k(f"""
v_and_b32 v3, 15, v2
s_and_b32 s36, s30, 3
s_lshl_b32 s36, s36, 4
v_add_u32 v3, s36, v3
v_mul_u32_u24 v3, {T_RS}, v3
v_lshlrev_b32 v4, 4, v4
v_add_u32 v3, v3, v4
s_lshr_b32 s37, s30, 2
s_mul_i32 s37, s37, {T_SZ}
s_add_u32 s37, s37, {T_BASE}
v_add_u32 v3, s37, v3
s_nop 7
""")
    for nb in range(5):
        k(f"ds_write_b128 v3, v[{44+4*nb}:{47+4*nb}] offset:{nb*64}")
    k("s_waitcnt lgkmcnt(0)\ns_barrier")

def g2_epilogue(k):
    for ps in range(2):
        if ps == 1:
            k("s_cmp_ge_u32 s30, 2\ns_cbranch_scc1 @ep_done")
        X = 64 + 4*ps; ST = 72 + 2*ps; OFF = 76 + ps; TOK = 78 + ps; TA = 80 + ps
        k(f"""
ds_read_b128 v[16:19], v{TA}
ds_read_b128 v[20:23], v{TA} offset:16
ds_read_b128 v[24:27], v{TA} offset:{T_SZ}
ds_read_b128 v[28:31], v{TA} offset:{T_SZ+16}
""")
        for i in range(4):
            k(f"""v_lshlrev_b32 v{84+2*i}, 16, v{X+i}
v_and_b32 v{85+2*i}, 0xffff0000, v{X+i}
v_pk_add_f32 v[40:41], v[{84+2*i}:{85+2*i}], v[{ST}:{ST+1}] op_sel_hi:[1,0] neg_lo:[0,1] neg_hi:[0,1]
v_cvt_pk_bf16_f32 v40, v40, v41
v_and_b32 v41, 0xffff0000, v40
v_lshlrev_b32 v40, 16, v40
v_pk_mul_f32 v[40:41], v[40:41], v[{ST}:{ST+1}] op_sel:[0,1] op_sel_hi:[1,1]
v_cvt_pk_bf16_f32 v40, v40, v41
v_lshlrev_b32 v{32+2*i}, 16, v40
v_and_b32 v{33+2*i}, 0xffff0000, v40""")
        k(f"""
v_cmp_eq_u32 s[56:57], s52, v{TOK}
v_cmp_eq_u32 s[58:59], s53, v{TOK}
s_nop 1
s_or_b64 s[60:61], s[56:57], s[58:59]
s_cmp_eq_u64 s[60:61], 0
s_cbranch_scc1 @ep_noupd{ps}
s_mov_b64 s[62:63], exec
s_mov_b64 exec, s[60:61]
v_mul_u32_u24 v40, 1280, v{TOK}
v_sub_u32 v40, v{OFF}, v40
v_lshlrev_b32 v40, 1, v40                 ; n*4
v_add_u32 v41, 2560, v40
v_cndmask_b32 v40, v40, v41, s[58:59]
v_mov_b32 v41, s54
v_mov_b32 v42, s55
v_cndmask_b32 v42, v41, v42, s[58:59]     ; sig
""")
        for i in range(8):
            k(f"v_mov_b32 v{92+i}, 0")
        k(f"s_mov_b32 s36, {WS_YP}\ns_mov_b32 s37, 16\n@ep_yl{ps}:")
        k(f"""buffer_load_dwordx4 v[100:103], v40, s[20:23], s36 offen
buffer_load_dwordx4 v[104:107], v40, s[20:23], s36 offen offset:16
s_waitcnt vmcnt(0)""")
        for i in range(4):
            k(f"v_pk_add_f32 v[{92+2*i}:{93+2*i}], v[{92+2*i}:{93+2*i}], v[{100+2*i}:{101+2*i}]")
        k(f"""s_add_u32 s36, s36, 5120
s_sub_u32 s37, s37, 1
s_cmp_lg_u32 s37, 0
s_cbranch_scc1 @ep_yl{ps}""")
        for i in range(4):
            k(f"""v_cvt_pk_bf16_f32 v40, v{92+2*i}, v{93+2*i}
v_and_b32 v41, 0xffff0000, v40
v_lshlrev_b32 v40, 16, v40
v_pk_mul_f32 v[40:41], v[40:41], v[42:43] op_sel_hi:[1,0]
v_cvt_pk_bf16_f32 v40, v40, v41
v_and_b32 v41, 0xffff0000, v40
v_lshlrev_b32 v40, 16, v40
v_pk_add_f32 v[40:41], v[40:41], v[{32+2*i}:{33+2*i}]
v_cvt_pk_bf16_f32 v40, v40, v41
v_lshlrev_b32 v{32+2*i}, 16, v40
v_and_b32 v{33+2*i}, 0xffff0000, v40""")
        k(f"""s_mov_b64 exec, s[62:63]
@ep_noupd{ps}:
s_waitcnt lgkmcnt(0)
""")
        for i in range(4):
            k(f"""v_pk_add_f32 v[{16+2*i}:{17+2*i}], v[{16+2*i}:{17+2*i}], v[{24+2*i}:{25+2*i}]
v_cvt_pk_bf16_f32 v40, v{16+2*i}, v{17+2*i}          ; A (bf16)
v_and_b32 v41, 0xffff0000, v40
v_lshlrev_b32 v40, 16, v40
v_pk_add_f32 v[40:41], v[40:41], v[{84+2*i}:{85+2*i}]   ; x + A
v_cvt_pk_bf16_f32 v40, v40, v41
v_and_b32 v41, 0xffff0000, v40
v_lshlrev_b32 v40, 16, v40
v_pk_add_f32 v[40:41], v[40:41], v[{32+2*i}:{33+2*i}]   ; + B
v_cvt_pk_bf16_f32 v{24+i}, v40, v41""")
        k(f"buffer_store_dwordx4 v[24:27], v{OFF}, s[12:15], 0 offen")
    k("@ep_done:")

def gen_k3(a, name):
    k = K(a, "k3")
    kernel_begin(a, name)
    k(f"""
s_cmp_ge_u32 s2, 256
s_cbranch_scc1 @end
{'s_memtime s[70:71]' if STAMP else ''}
s_load_dwordx2 s[16:17], s[0:1], 80       ; ws
s_load_dwordx2 s[18:19], s[0:1], 0        ; x
s_load_dwordx2 s[24:25], s[0:1], 16       ; wo
s_load_dwordx2 s[26:27], s[0:1], 64       ; out
v_lshrrev_b32 v1, 6, v0
v_and_b32 v2, 63, v0
v_readfirstlane_b32 s30, v1
""")
    g2_decode(k)
    k("s_waitcnt lgkmcnt(0)")
    srd(k, 20, 16, WS_END)
    srd(k, 4, 18, S*1280)
    srd(k, 8, 24, 640*1280)
    srd(k, 12, 26, S*1280)
    k(f"s_add_u32 s28, s16, {WS_TOP}\ns_addc_u32 s29, s17, 0\ns_load_dwordx4 s[52:55], s[28:29], 0")
    g2_load_wo(k)
    g2_prefetch_x(k)
    g2_load_o(k)
    k("s_waitcnt vmcnt(20)\ns_barrier")
    stamp(k, 1)
    g2_main(k)
    stamp(k, 2)
    k("s_waitcnt lgkmcnt(0)")
    g2_epilogue(k)
    stamp(k, 3)
    stamp_flush(k, 4, "g")
    k("@end:\ns_endpgm")
```

```python
import sys
from gen_common import *
import gen_k1, gen_k2

def build(mode, out):
    a = Asm()
    hdr = open("cdna_kernels/" + NAME + ".s.ref").read().split("\n")
    for l in hdr:
        if not l.startswith(";"): break
        if l.startswith("; Override") or l.startswith("; grid=ceil") or l.startswith("; @launch"):
            continue
        a(l)
    kernels = []
    def add(nm, fn, vg, lds):
        a(f"; @launch kernel={nm} grid=(256,1,1) block=(512,1,1) lds={lds}")
        kernels.append((nm, fn, vg))
    add("k1_kernel", gen_k1.gen_k1, 128, 135168)
    if mode in ("k12", "multi"):
        add("k2_kernel", gen_k2.gen_k2, 256, 49152)
    if mode == "multi":
        import gen_k3
        add("k3_kernel", gen_k3.gen_k3, 168, gen_k3.LDS_BYTES)
    a('.amdgcn_target "amdgcn-amd-amdhsa--gfx950"\n.text')
    for nm, fn, vg in kernels:
        fn(a, nm)
    a('.section .rodata,"a"')
    for nm, fn, vg in kernels:
        a(".p2align 6")
        kernel_desc(a, nm, vg, 102)
    open(out, "w").write(a.text())

if __name__ == "__main__":
    build(sys.argv[1], sys.argv[2])
```
